```python
import torch

def _softmax(x, axis=-1):
    return torch.softmax(x, dim=axis)
def _gelu(x):
    return torch.nn.functional.gelu(x, approximate="tanh")
def _silu(x):
    return torch.nn.functional.silu(x)
def _sigmoid(x):
    return torch.sigmoid(x)
def _layernorm(x, axis=-1, eps=1e-5):
    m = x.mean(dim=axis, keepdim=True)
    v = x.var(dim=axis, keepdim=True, unbiased=False)
    return (x - m) / torch.sqrt(v + eps)
def _scatter_add(tgt, idx, src, axis=0):
    return tgt.clone().index_add_(axis, idx, src)
def _segment_sum(src, seg, n):
    out = torch.zeros((n,) + src.shape[1:], dtype=src.dtype)
    return out.index_add_(0, seg, src)
def _pad(x, pw):
    flat = tuple(v for pair in reversed(pw) for v in pair)
    return torch.nn.functional.pad(x, flat)

kernel_name = 'standalone__low_rank_proj_linformer__prompt'

def setup_inputs():

    _w = (lambda a: (lambda t: t.to(torch.bfloat16) if t.is_floating_point() else t)(torch.as_tensor(a)))
    B, H, Sq, Skv, Dh, R = 1, 32, 2048, 2048, 128, 8
    return {
        "q": _w((lambda *s: torch.randn(*s, dtype=torch.bfloat16) * 0.8)(B, H, Sq, Dh)),
        "k": _w((lambda *s: torch.randn(*s, dtype=torch.bfloat16) * 0.8)(B, H, Skv, Dh)),
        "v": _w((lambda *s: torch.randn(*s, dtype=torch.bfloat16) * 0.05)(B, H, Skv, Dh)),
        "e_proj": _w((lambda *s: torch.randn(*s, dtype=torch.bfloat16) * 0.8)(R, Skv) * (Skv ** -0.5)),
        "f_proj": _w((lambda *s: torch.randn(*s, dtype=torch.bfloat16) * 0.05)(R, Skv) * (Skv ** -0.5)),
    }

def reference(q, k, v, e_proj, f_proj):
    B, H, Sq, Dh = q.shape
    kp = torch.einsum("rn,bhnd->bhrd", e_proj, k)
    vp = torch.einsum("rn,bhnd->bhrd", f_proj, v)
    scores = torch.einsum("bhqd,bhrd->bhqr", q, kp) * (Dh ** -0.5)
    p = _softmax(scores, axis=-1)
    o = torch.einsum("bhqr,bhrd->bhqd", p, vp)
    return o
```

```python
import sys
NAME = "standalone__low_rank_proj_linformer__prompt_kernel"
L = []
def e(s): L.append("    " + s)
def lab(s): L.append(s + ":")

LDS_RED = 8192
LDS_KP = 0
LDS_VP = 4096
LDS_TOTAL = 65536 + 8192

hdr = open('standalone__low_rank_proj_linformer__prompt.s.ref').read().split('\n')
out = []
for line in hdr:
    if line.startswith('; @launch'):
        out.append('; @launch grid=(256,1,1) block=(768,1,1) lds=%d' % LDS_TOTAL)
        break
    out.append(line)

out.append('.amdgcn_target "amdgcn-amd-amdhsa--gfx950"')
out.append('.text')
out.append('.globl ' + NAME)
out.append('.p2align 8')
out.append('.type %s,@function' % NAME)
out.append(NAME + ':')

e("s_cmp_ge_u32 s2, 256")
e("s_cbranch_scc1 L_end")
e("s_load_dwordx16 s[4:19], s[0:1], 0")
e("v_and_b32 v1, 63, v0")
e("v_lshrrev_b32 v2, 4, v1")
e("v_and_b32 v3, 15, v1")
e("v_lshrrev_b32 v4, 6, v0")
e("s_and_b32 s21, s2, 31")
e("v_readfirstlane_b32 s20, v4")
e("s_lshr_b32 s22, s2, 5")
e("s_lshl_b32 s23, s21, 19")
e("s_lshl_b32 s24, s22, 16")
e("s_add_u32 s23, s23, s24")
e("v_lshlrev_b32 v10, 8, v3")
e("v_lshl_add_u32 v10, v2, 4, v10")
e("s_waitcnt lgkmcnt(0)")
e("s_cmp_ge_u32 s20, 8")
e("s_cbranch_scc1 L_qwave")

def srd(base, lo, hi, size):
    e("s_mov_b32 s%d, s%d" % (base, lo))
    e("s_and_b32 s%d, s%d, 0xffff" % (base+1, hi))
    e("s_mov_b32 s%d, 0x%x" % (base+2, size))
    e("s_mov_b32 s%d, 0x00020000" % (base+3))
srd(28, 6, 7, 1<<24)
srd(32, 8, 9, 1<<24)
srd(36, 18, 19, 1<<21)
srd(40, 10, 11, 32768)
srd(44, 12, 13, 32768)
e("s_lshl_b32 s25, s20, 13")
e("s_add_u32 s25, s25, s23")
e("s_add_u32 s26, s25, 4096")
e("v_and_b32 v5, 7, v3")
e("v_lshlrev_b32 v5, 12, v5")
e("v_lshl_add_u32 v5, v2, 3, v5")
e("s_lshl_b32 s27, s22, 9")
e("s_lshl_b32 s48, s20, 6")
e("s_add_u32 s27, s27, s48")
e("v_add_u32 v5, s27, v5")
e("v_mov_b32 v6, 0x80000000")
e("v_cmp_gt_u32 vcc, 8, v3")
e("s_nop 1")
e("v_cndmask_b32 v7, v6, v5, vcc")
e("v_cndmask_b32 v8, v5, v6, vcc")
e("buffer_load_dwordx2 v[16:17], v7, s[40:43], 0 offen")
e("buffer_load_dwordx2 v[18:19], v7, s[40:43], 0 offen offset:32")
e("buffer_load_dwordx2 v[20:21], v8, s[44:47], 0 offen")
e("buffer_load_dwordx2 v[22:23], v8, s[44:47], 0 offen offset:32")
for X, (srdb, base) in enumerate([(28, 32), (32, 64)]):
    for b in range(2):
        for c in range(4):
            r = base + b*16 + c*4
            e("buffer_load_dwordx4 v[%d:%d], v10, s[%d:%d], s%d offen offset:%d" % (r, r+3, srdb, srdb+3, 25+b, c*64))
e("v_lshlrev_b32 v6, 3, v2")
e("v_sub_u32 v6, v3, v6")
e("v_mov_b32 v7, 0x3f80")
e("v_mov_b32 v8, 0x3f800000")
for half in range(2):
    for i in range(4):
        d = 24 + half*4 + i
        e("v_cmp_eq_u32 vcc, %d, v6" % (2*i - 16*half))
        e("v_cmp_eq_u32 s[50:51], %d, v6" % (2*i + 1 - 16*half))
        e("s_nop 1")
        e("v_cndmask_b32 v%d, 0, v7, vcc" % d)
        e("v_cndmask_b32 v9, 0, v8, s[50:51]")
        e("v_or_b32 v%d, v%d, v9" % (d, d))
ACC = 96; TMP = 128; BOP = 144
waits = {(0,0): 12, (0,1): 8, (1,0): 4, (1,1): 0}
first = True
for X in range(2):
    base = 32 + X*32
    A = 16 + X*4
    for b in range(2):
        e("s_waitcnt vmcnt(%d)" % waits[(X,b)])
        for hb in range(2):
            for cc in range(2):
                c = hb*2 + cc
                r = base + b*16 + c*4
                for half in range(2):
                    t = TMP + (cc*2+half)*4
                    e("v_mfma_f32_16x16x32_bf16 v[%d:%d], v[%d:%d], v[%d:%d], 0" % (t, t+3, r, r+3, 24+half*4, 27+half*4))
            e("s_nop 7")
            for cc in range(2):
                c = hb*2 + cc
                for half in range(2):
                    t = TMP + (cc*2+half)*4
                    tile = c*2 + half
                    e("v_cvt_pk_bf16_f32 v%d, v%d, v%d" % (BOP+tile*2, t, t+1))
                    e("v_cvt_pk_bf16_f32 v%d, v%d, v%d" % (BOP+tile*2+1, t+2, t+3))
        e("s_nop 1")
        for tile in range(8):
            a = ACC + tile*4
            e("v_mfma_f32_16x16x16_bf16 v[%d:%d], v[%d:%d], v[%d:%d], %s" % (a, a+3, A+b*2, A+b*2+1, BOP+tile*2, BOP+tile*2+1, "0" if first else "v[%d:%d]" % (a, a+3)))
        first = False
e("s_nop 7")
e("v_lshlrev_b32 v5, 4, v1")
e("v_add_u32 v5, %d, v5" % LDS_RED)
e("s_lshl_b32 s48, s20, 13")
e("v_add_u32 v6, s48, v5")
for tile in range(8):
    a = ACC + tile*4
    e("ds_write_b128 v6, v[%d:%d] offset:%d" % (a, a+3, tile*1024))
e("s_waitcnt lgkmcnt(0)")
e("s_barrier")
e("s_lshl_b32 s48, s20, 10")
e("v_add_u32 v6, s48, v5")
for w2 in range(8):
    r = 32 + w2*4
    e("ds_read_b128 v[%d:%d], v6 offset:%d" % (r, r+3, w2*8192))
for w2 in range(1, 8):
    r = 32 + w2*4
    e("s_waitcnt lgkmcnt(%d)" % (7 - w2))
    for j in range(4):
        e("v_add_f32 v%d, v%d, v%d" % (32+j, 32+j, r+j))
e("v_lshlrev_b32 v7, 4, v0")
e("s_lshl_b32 s48, s21, 16")
e("s_lshl_b32 s49, s22, 13")
e("s_add_u32 s49, s49, s48")
e("buffer_store_dwordx4 v[32:35], v7, s[36:39], s49 offen sc1")
e("s_waitcnt vmcnt(0)")
e("s_barrier")
e("s_cmp_lg_u32 s20, 0")
e("s_cbranch_scc1 L_nopoll")
e("s_lshl_b32 s49, s21, 2")
e("v_mov_b32 v8, s49")
e("v_mov_b32 v9, 1")
e("s_mov_b64 exec, 1")
e("global_atomic_add v8, v9, s[16:17]")
e("s_mov_b64 exec, -1")
e("s_mov_b32 s50, 0")
lab("L_poll")
e("global_load_dword v9, v8, s[16:17] sc1")
e("s_waitcnt vmcnt(0)")
e("v_readfirstlane_b32 s51, v9")
e("s_add_u32 s50, s50, 1")
e("s_cmp_ge_u32 s51, 8")
e("s_cbranch_scc1 L_nopoll")
e("s_cmp_lt_u32 s50, 0x40000")
e("s_cbranch_scc0 L_nopoll")
e("s_sleep 1")
e("s_branch L_poll")
lab("L_nopoll")
e("s_barrier")
for s2 in range(8):
    r = 32 + s2*4
    e("s_add_u32 s49, s48, %d" % (s2*8192))
    e("buffer_load_dwordx4 v[%d:%d], v7, s[36:39], s49 offen sc1" % (r, r+3))
for s2 in range(1, 8):
    r = 32 + s2*4
    e("s_waitcnt vmcnt(%d)" % (7 - s2))
    for j in range(4):
        e("v_add_f32 v%d, v%d, v%d" % (32+j, 32+j, r+j))
e("v_cvt_pk_bf16_f32 v36, v32, v33")
e("v_cvt_pk_bf16_f32 v37, v34, v35")
e("s_lshl_b32 s49, s20, 4")
e("v_add_u32 v8, s49, v3")
e("v_lshlrev_b32 v9, 10, v2")
e("v_lshl_add_u32 v9, v8, 1, v9")
e("v_and_b32 v11, 1, v2")
e("v_lshlrev_b32 v11, 3, v11")
e("v_lshl_add_u32 v11, v8, 4, v11")
e("s_mov_b32 exec_lo, -1")
e("s_mov_b32 exec_hi, 0")
e("ds_write_b16 v9, v36 offset:%d" % (LDS_KP))
e("ds_write_b16_d16_hi v9, v36 offset:%d" % (LDS_KP+256))
e("ds_write_b16 v9, v37 offset:%d" % (LDS_KP+512))
e("ds_write_b16_d16_hi v9, v37 offset:%d" % (LDS_KP+768))
e("s_mov_b32 exec_lo, 0")
e("s_mov_b32 exec_hi, -1")
e("ds_write_b64 v11, v[36:37] offset:%d" % (LDS_VP))
e("s_mov_b64 exec, -1")
e("s_waitcnt lgkmcnt(0)")
e("s_barrier")
e("s_endpgm")

lab("L_qwave")
srd(28, 4, 5, 1<<24)
srd(32, 14, 15, 1<<24)
e("v_subrev_u32 v5, 512, v0")
e("v_lshlrev_b32 v5, 3, v5")
e("v_mov_b32 v6, 0")
e("v_mov_b32 v7, 0")
e("ds_write_b64 v5, v[6:7] offset:%d" % (LDS_KP + 2048))
e("s_sub_u32 s25, s20, 8")
e("s_lshl_b32 s25, s25, 14")
e("s_add_u32 s25, s25, s23")
e("s_waitcnt lgkmcnt(0)")
e("s_barrier")
Q = 32
for blk in range(4):
    e("s_add_u32 s26, s25, %d" % (blk*4096))
    for c in range(4):
        r = Q + blk*16 + c*4
        e("buffer_load_dwordx4 v[%d:%d], v10, s[28:31], s26 offen offset:%d" % (r, r+3, c*64))
e("v_lshlrev_b32 v5, 8, v3")
e("v_lshl_add_u32 v5, v2, 4, v5")
e("v_lshrrev_b32 v6, 2, v3")
e("v_lshlrev_b32 v6, 3, v6")
e("v_and_b32 v7, 3, v3")
e("v_add_u32 v6, v6, v7")
e("v_lshlrev_b32 v6, 4, v6")
e("v_and_b32 v7, 1, v2")
e("v_lshl_add_u32 v6, v7, 3, v6")
e("v_cmp_gt_u32 vcc, 2, v2")
e("s_mov_b32 s50, 0x3db504f3")
e("s_mov_b32 s51, 0x3fb8aa3b")
e("s_mov_b32 s52, 0xffff0000")
e("s_barrier")
e("s_barrier")
e("s_barrier")
KPA = 96; VPA = 112; O = 128; S = 12
for c in range(4):
    e("ds_read_b128 v[%d:%d], v5 offset:%d" % (KPA+c*4, KPA+c*4+3, LDS_KP + c*64))
for t in range(8):
    e("ds_read_b64 v[%d:%d], v6 offset:%d" % (VPA+t*2, VPA+t*2+1, LDS_VP + (t>>1)*512 + (t&1)*64))
e("s_waitcnt lgkmcnt(0)")
for t in range(16):
    e("v_cndmask_b32 v%d, 0, v%d, vcc" % (VPA+t, VPA+t))
for blk in range(4):
    e("s_waitcnt vmcnt(12)")
    for c in range(4):
        r = Q + blk*16 + c*4
        e("v_mfma_f32_16x16x32_bf16 v[%d:%d], v[%d:%d], v[%d:%d], %s" % (S, S+3, KPA+c*4, KPA+c*4+3, r, r+3, "0" if c == 0 else "v[%d:%d]" % (S, S+3)))
    e("s_nop 7")
    e("v_cvt_pk_bf16_f32 v16, v12, v13")
    e("v_cvt_pk_bf16_f32 v17, v14, v15")
    e("v_lshlrev_b32 v12, 16, v16")
    e("v_and_b32 v13, s52, v16")
    e("v_lshlrev_b32 v14, 16, v17")
    e("v_and_b32 v15, s52, v17")
    for j in range(4):
        e("v_mul_f32 v%d, s50, v%d" % (12+j, 12+j))
    e("v_cvt_pk_bf16_f32 v16, v12, v13")
    e("v_cvt_pk_bf16_f32 v17, v14, v15")
    e("v_lshlrev_b32 v12, 16, v16")
    e("v_and_b32 v13, s52, v16")
    e("v_lshlrev_b32 v14, 16, v17")
    e("v_and_b32 v15, s52, v17")
    e("v_max_f32 v16, v12, v13")
    e("v_max3_f32 v16, v16, v14, v15")
    e("v_mov_b32 v17, v16")
    e("s_nop 1")
    e("v_permlane16_swap_b32 v16, v17")
    e("v_max_f32 v16, v16, v17")
    for j in range(4):
        e("v_sub_f32 v%d, v%d, v16" % (12+j, 12+j))
    for j in range(4):
        e("v_mul_f32 v%d, s51, v%d" % (12+j, 12+j))
    for j in range(4):
        e("v_exp_f32 v%d, v%d" % (12+j, 12+j))
    e("s_nop 0")
    e("v_add_f32 v16, v12, v13")
    e("v_add_f32 v17, v14, v15")
    e("v_add_f32 v16, v16, v17")
    e("v_mov_b32 v17, v16")
    e("s_nop 1")
    e("v_permlane16_swap_b32 v16, v17")
    e("v_add_f32 v16, v16, v17")
    e("v_rcp_f32 v16, v16")
    e("s_nop 0")
    for j in range(4):
        e("v_mul_f32 v%d, v%d, v16" % (12+j, 12+j))
    e("v_cvt_pk_bf16_f32 v18, v12, v13")
    e("v_cvt_pk_bf16_f32 v19, v14, v15")
    e("s_nop 1")
    for t in range(8):
        o = O + t*4
        e("v_mfma_f32_16x16x16_bf16 v[%d:%d], v[%d:%d], v[18:19], 0" % (o, o+3, VPA+t*2, VPA+t*2+1))
    e("s_nop 7")
    for tp in range(4):
        o = O + tp*8
        dst = 20 + tp*4 if False else Q + blk*16 + tp*4
        e("v_cvt_pk_bf16_f32 v%d, v%d, v%d" % (dst, o, o+1))
        e("v_cvt_pk_bf16_f32 v%d, v%d, v%d" % (dst+1, o+2, o+3))
        e("v_cvt_pk_bf16_f32 v%d, v%d, v%d" % (dst+2, o+4, o+5))
        e("v_cvt_pk_bf16_f32 v%d, v%d, v%d" % (dst+3, o+6, o+7))
    e("s_add_u32 s26, s25, %d" % (blk*4096))
    for tp in range(4):
        dst = Q + blk*16 + tp*4
        e("buffer_store_dwordx4 v[%d:%d], v10, s[32:35], s26 offen offset:%d" % (dst, dst+3, tp*64))
lab("L_end")
e("s_endpgm")

out += L
out.append('.section .rodata,"a"')
out.append('.p2align 6')
out.append('.amdhsa_kernel ' + NAME)
out.append('  .amdhsa_next_free_vgpr 160')
out.append('  .amdhsa_next_free_sgpr 64')
out.append('  .amdhsa_accum_offset 160')
out.append('  .amdhsa_group_segment_fixed_size 0')
out.append('  .amdhsa_kernarg_size 64')
out.append('  .amdhsa_user_sgpr_count 2')
out.append('  .amdhsa_user_sgpr_kernarg_segment_ptr 1')
out.append('  .amdhsa_system_sgpr_workgroup_id_x 1')
out.append('.end_amdhsa_kernel')
open(sys.argv[1], 'w').write('\n'.join(out) + '\n')
```

```python
import sys
BASE = "standalone__low_rank_proj_linformer__prompt"
K1 = BASE + "_kernel"
K2 = BASE + "_p2_kernel"
L = []
def e(s): L.append("    " + s)
def lab(s): L.append(s + ":")
STAMP = len(sys.argv) > 2
def stamp(idx):
    if not STAMP: return
    e("s_memrealtime s[56:57]")
    e("s_waitcnt lgkmcnt(0)")
    e("v_mov_b32 v150, s56")
    e("v_mov_b32 v151, s57")
    e("v_mov_b32 v152, s58")
    e("s_mov_b64 exec, 1")
    e("global_store_dwordx2 v152, v[150:151], s[18:19] offset:%d" % (idx*8))
    e("s_mov_b64 exec, -1")

LDS1 = 65536
LDS_KP = 0
LDS_VP = 4096
LDS2 = 6144

hdr = open('standalone__low_rank_proj_linformer__prompt.s.ref').read().split('\n')
out = []
for line in hdr:
    if line.startswith('; @launch'):
        out.append('; @launch kernel=%s grid=(256,1,1) block=(512,1,1) lds=%d' % (K1, LDS1))
        out.append('; @launch kernel=%s grid=(256,1,1) block=(512,1,1) lds=%d' % (K2, LDS2))
        break
    out.append(line)
out.append('.amdgcn_target "amdgcn-amd-amdhsa--gfx950"')
out.append('.text')

def srd(base, lo, hi, size):
    e("s_mov_b32 s%d, s%d" % (base, lo))
    e("s_and_b32 s%d, s%d, 0xffff" % (base+1, hi))
    e("s_mov_b32 s%d, 0x%x" % (base+2, size))
    e("s_mov_b32 s%d, 0x00020000" % (base+3))

def prologue(name, endlab):
    L.append('.globl ' + name)
    L.append('.p2align 8')
    L.append('.type %s,@function' % name)
    L.append(name + ':')
    e("s_cmp_ge_u32 s2, 256")
    e("s_cbranch_scc1 " + endlab)
    e("s_load_dwordx16 s[4:19], s[0:1], 0")
    e("v_and_b32 v1, 63, v0")
    e("v_lshrrev_b32 v2, 4, v1")
    e("v_and_b32 v3, 15, v1")
    e("v_lshrrev_b32 v4, 6, v0")
    e("s_and_b32 s21, s2, 31")
    e("v_readfirstlane_b32 s20, v4")
    e("s_lshr_b32 s22, s2, 5")
    e("s_lshl_b32 s23, s21, 19")
    e("s_lshl_b32 s24, s22, 16")
    e("s_add_u32 s23, s23, s24")
    e("v_lshlrev_b32 v10, 8, v3")
    e("v_lshl_add_u32 v10, v2, 4, v10")
    e("s_lshl_b32 s58, s2, 8")
    e("s_add_u32 s58, s58, 0x400000")
    e("s_lshl_b32 s59, s20, 20")
    e("s_add_u32 s58, s58, s59")
    e("s_waitcnt lgkmcnt(0)")

prologue(K1, "L_end1")
stamp(0)
srd(28, 6, 7, 1<<24)
srd(32, 8, 9, 1<<24)
srd(36, 18, 19, 1<<21)
srd(40, 10, 11, 32768)
srd(44, 12, 13, 32768)
e("s_lshl_b32 s25, s20, 13")
e("s_add_u32 s25, s25, s23")
e("s_add_u32 s26, s25, 4096")
e("v_and_b32 v5, 7, v3")
e("v_lshlrev_b32 v5, 12, v5")
e("v_lshl_add_u32 v5, v2, 3, v5")
e("s_lshl_b32 s27, s22, 9")
e("s_lshl_b32 s48, s20, 6")
e("s_add_u32 s27, s27, s48")
e("v_add_u32 v5, s27, v5")
e("v_mov_b32 v6, 0x80000000")
e("v_cmp_gt_u32 vcc, 8, v3")
e("s_nop 1")
e("v_cndmask_b32 v7, v6, v5, vcc")
e("v_cndmask_b32 v8, v5, v6, vcc")
for X, (srdb, base) in enumerate([(28, 32), (32, 64)]):
    for b in range(2):
        for c in range(4):
            r = base + b*16 + c*4
            e("buffer_load_dwordx4 v[%d:%d], v10, s[%d:%d], s%d offen offset:%d" % (r, r+3, srdb, srdb+3, 25+b, c*64))
    if X == 0:
        e("buffer_load_dwordx2 v[16:17], v7, s[40:43], 0 offen")
        e("buffer_load_dwordx2 v[18:19], v7, s[40:43], 0 offen offset:32")
        e("buffer_load_dwordx2 v[20:21], v8, s[44:47], 0 offen")
        e("buffer_load_dwordx2 v[22:23], v8, s[44:47], 0 offen offset:32")
e("v_lshlrev_b32 v6, 3, v2")
e("v_sub_u32 v6, v3, v6")
e("v_mov_b32 v7, 0x3f80")
e("v_mov_b32 v8, 0x3f800000")
for half in range(2):
    for i in range(4):
        d = 24 + half*4 + i
        e("v_cmp_eq_u32 vcc, %d, v6" % (2*i - 16*half))
        e("v_cmp_eq_u32 s[50:51], %d, v6" % (2*i + 1 - 16*half))
        e("s_nop 1")
        e("v_cndmask_b32 v%d, 0, v7, vcc" % d)
        e("v_cndmask_b32 v9, 0, v8, s[50:51]")
        e("v_or_b32 v%d, v%d, v9" % (d, d))
ACC = 96; TMP = 128; BOP = 144
waits = {(0,0): 16, (0,1): 8, (1,0): 4, (1,1): 0}
first = True
for X in range(2):
    base = 32 + X*32
    A = 16 + X*4
    for b in range(2):
        e("s_waitcnt vmcnt(%d)" % waits[(X,b)])
        for hb in range(2):
            for cc in range(2):
                c = hb*2 + cc
                r = base + b*16 + c*4
                for half in range(2):
                    t = TMP + (cc*2+half)*4
                    e("v_mfma_f32_16x16x32_bf16 v[%d:%d], v[%d:%d], v[%d:%d], 0" % (t, t+3, r, r+3, 24+half*4, 27+half*4))
            e("s_nop 7")
            for cc in range(2):
                c = hb*2 + cc
                for half in range(2):
                    t = TMP + (cc*2+half)*4
                    tile = c*2 + half
                    e("v_cvt_pk_bf16_f32 v%d, v%d, v%d" % (BOP+tile*2, t, t+1))
                    e("v_cvt_pk_bf16_f32 v%d, v%d, v%d" % (BOP+tile*2+1, t+2, t+3))
        if (X, b) == (0, 0):
            e("s_waitcnt vmcnt(8)")
        e("s_nop 1")
        for tile in range(8):
            a = ACC + tile*4
            e("v_mfma_f32_16x16x16_bf16 v[%d:%d], v[%d:%d], v[%d:%d], %s" % (a, a+3, A+b*2, A+b*2+1, BOP+tile*2, BOP+tile*2+1, "0" if first else "v[%d:%d]" % (a, a+3)))
        first = False
e("v_lshlrev_b32 v5, 4, v1")
e("s_lshl_b32 s48, s20, 13")
e("v_add_u32 v6, s48, v5")
e("s_nop 5")
stamp(1)
for tile in range(8):
    a = ACC + tile*4
    e("ds_write_b128 v6, v[%d:%d] offset:%d" % (a, a+3, tile*1024))
e("s_waitcnt lgkmcnt(0)")
e("s_barrier")
stamp(2)
e("s_lshl_b32 s48, s20, 10")
e("v_add_u32 v6, s48, v5")
for w2 in range(8):
    r = 32 + w2*4
    e("ds_read_b128 v[%d:%d], v6 offset:%d" % (r, r+3, w2*8192))
for w2 in range(1, 8):
    r = 32 + w2*4
    e("s_waitcnt lgkmcnt(%d)" % (7 - w2))
    for j in range(4):
        e("v_add_f32 v%d, v%d, v%d" % (32+j, 32+j, r+j))
e("v_lshlrev_b32 v7, 4, v0")
e("s_lshl_b32 s48, s21, 16")
e("s_lshl_b32 s49, s22, 13")
e("s_add_u32 s49, s49, s48")
e("buffer_store_dwordx4 v[32:35], v7, s[36:39], s49 offen")
if STAMP:
    e("s_waitcnt vmcnt(0)")
stamp(3)
lab("L_end1")
e("s_endpgm")

prologue(K2, "L_end2")
stamp(4)
srd(28, 4, 5, 1<<24)
srd(32, 14, 15, 1<<24)
srd(36, 18, 19, 1<<21)
e("v_lshlrev_b32 v7, 4, v0")
e("s_lshl_b32 s48, s21, 16")
for s2 in range(8):
    r = 64 + s2*4
    e("s_add_u32 s49, s48, %d" % (s2*8192))
    e("buffer_load_dwordx4 v[%d:%d], v7, s[36:39], s49 offen" % (r, r+3))
e("s_lshl_b32 s25, s20, 13")
e("s_add_u32 s25, s25, s23")
e("s_add_u32 s26, s25, 4096")
Q = 32
for blk in range(2):
    for c in range(4):
        r = Q + blk*16 + c*4
        e("buffer_load_dwordx4 v[%d:%d], v10, s[28:31], s%d offen offset:%d" % (r, r+3, 25+blk, c*64))
e("v_lshlrev_b32 v5, 2, v0")
e("v_mov_b32 v6, 0")
e("ds_write_b32 v5, v6 offset:%d" % (LDS_KP + 2048))
e("s_lshl_b32 s49, s20, 4")
e("v_add_u32 v8, s49, v3")
e("v_lshlrev_b32 v9, 10, v2")
e("v_lshl_add_u32 v9, v8, 1, v9")
e("v_and_b32 v11, 1, v2")
e("v_lshlrev_b32 v11, 3, v11")
e("v_lshl_add_u32 v11, v8, 4, v11")
e("v_lshrrev_b32 v6, 2, v3")
e("v_lshlrev_b32 v6, 3, v6")
e("v_and_b32 v5, 3, v3")
e("v_add_u32 v6, v6, v5")
e("v_lshlrev_b32 v6, 4, v6")
e("v_and_b32 v5, 1, v2")
e("v_lshl_add_u32 v6, v5, 3, v6")
e("v_mov_b32 v5, v10")
e("v_cmp_gt_u32 vcc, 2, v2")
e("s_mov_b32 s50, 0x3db504f3")
e("s_mov_b32 s51, 0x3fb8aa3b")
e("s_mov_b32 s52, 0xffff0000")
for s2 in range(1, 8):
    r = 64 + s2*4
    e("s_waitcnt vmcnt(%d)" % (15 - s2))
    for j in range(4):
        e("v_add_f32 v%d, v%d, v%d" % (64+j, 64+j, r+j))
e("v_cvt_pk_bf16_f32 v68, v64, v65")
e("v_cvt_pk_bf16_f32 v69, v66, v67")
e("s_mov_b32 exec_lo, -1")
e("s_mov_b32 exec_hi, 0")
e("ds_write_b16 v9, v68 offset:%d" % (LDS_KP))
e("ds_write_b16_d16_hi v9, v68 offset:%d" % (LDS_KP+256))
e("ds_write_b16 v9, v69 offset:%d" % (LDS_KP+512))
e("ds_write_b16_d16_hi v9, v69 offset:%d" % (LDS_KP+768))
e("s_mov_b32 exec_lo, 0")
e("s_mov_b32 exec_hi, -1")
e("ds_write_b64 v11, v[68:69] offset:%d" % (LDS_VP))
e("s_mov_b64 exec, -1")
e("s_waitcnt lgkmcnt(0)")
e("s_barrier")
stamp(5)
KPA = 96; VPA = 112; O = 128
for c in range(4):
    e("ds_read_b128 v[%d:%d], v5 offset:%d" % (KPA+c*4, KPA+c*4+3, LDS_KP + c*64))
for t in range(8):
    e("ds_read_b64 v[%d:%d], v6 offset:%d" % (VPA+t*2, VPA+t*2+1, LDS_VP + (t>>1)*512 + (t&1)*64))
e("s_waitcnt lgkmcnt(0)")
for t in range(16):
    e("v_cndmask_b32 v%d, 0, v%d, vcc" % (VPA+t, VPA+t))
SS = [12, 64]; TT = [16, 68]
e("s_waitcnt vmcnt(4)")
for c in range(4):
    r = Q + c*4
    S = SS[0]
    e("v_mfma_f32_16x16x32_bf16 v[%d:%d], v[%d:%d], v[%d:%d], %s" % (S, S+3, KPA+c*4, KPA+c*4+3, r, r+3, "0" if c == 0 else "v[%d:%d]" % (S, S+3)))
e("s_waitcnt vmcnt(0)")
for c in range(4):
    r = Q + 16 + c*4
    S = SS[1]
    e("v_mfma_f32_16x16x32_bf16 v[%d:%d], v[%d:%d], v[%d:%d], %s" % (S, S+3, KPA+c*4, KPA+c*4+3, r, r+3, "0" if c == 0 else "v[%d:%d]" % (S, S+3)))
e("s_nop 7")
def both(fn):
    for b in range(2):
        fn(SS[b], TT[b])
def rnd(S, T):
    e("v_cvt_pk_bf16_f32 v%d, v%d, v%d" % (T, S, S+1))
    e("v_cvt_pk_bf16_f32 v%d, v%d, v%d" % (T+1, S+2, S+3))
    e("v_lshlrev_b32 v%d, 16, v%d" % (S, T))
    e("v_and_b32 v%d, s52, v%d" % (S+1, T))
    e("v_lshlrev_b32 v%d, 16, v%d" % (S+2, T+1))
    e("v_and_b32 v%d, s52, v%d" % (S+3, T+1))
both(rnd)
def scl(S, T):
    for j in range(4): e("v_mul_f32 v%d, s50, v%d" % (S+j, S+j))
both(scl)
both(rnd)
def mx(S, T):
    e("v_max_f32 v%d, v%d, v%d" % (T, S, S+1))
    e("v_max3_f32 v%d, v%d, v%d, v%d" % (T, T, S+2, S+3))
    e("v_mov_b32 v%d, v%d" % (T+1, T))
both(mx)
e("s_nop 1")
def sw(S, T):
    e("v_permlane16_swap_b32 v%d, v%d" % (T, T+1))
both(sw)
def mx2(S, T):
    e("v_max_f32 v%d, v%d, v%d" % (T, T, T+1))
    for j in range(4): e("v_sub_f32 v%d, v%d, v%d" % (S+j, S+j, T))
    for j in range(4): e("v_mul_f32 v%d, s51, v%d" % (S+j, S+j))
    for j in range(4): e("v_exp_f32 v%d, v%d" % (S+j, S+j))
both(mx2)
def sm(S, T):
    e("v_add_f32 v%d, v%d, v%d" % (T, S, S+1))
    e("v_add_f32 v%d, v%d, v%d" % (T+1, S+2, S+3))
    e("v_add_f32 v%d, v%d, v%d" % (T, T, T+1))
    e("v_mov_b32 v%d, v%d" % (T+1, T))
both(sm)
e("s_nop 1")
both(sw)
def sm2(S, T):
    e("v_add_f32 v%d, v%d, v%d" % (T, T, T+1))
    e("v_rcp_f32 v%d, v%d" % (T, T))
both(sm2)
def nrm(S, T):
    for j in range(4): e("v_mul_f32 v%d, v%d, v%d" % (S+j, S+j, T))
    e("v_cvt_pk_bf16_f32 v%d, v%d, v%d" % (T+2, S, S+1))
    e("v_cvt_pk_bf16_f32 v%d, v%d, v%d" % (T+3, S+2, S+3))
both(nrm)
e("s_nop 1")
for b in range(2):
    T = TT[b]
    for t in range(8):
        o = O + t*4
        e("v_mfma_f32_16x16x16_bf16 v[%d:%d], v[%d:%d], v[%d:%d], 0" % (o, o+3, VPA+t*2, VPA+t*2+1, T+2, T+3))
    e("s_nop 7")
    for tp in range(4):
        o = O + tp*8
        dst = Q + b*16 + tp*4
        e("v_cvt_pk_bf16_f32 v%d, v%d, v%d" % (dst, o, o+1))
        e("v_cvt_pk_bf16_f32 v%d, v%d, v%d" % (dst+1, o+2, o+3))
        e("v_cvt_pk_bf16_f32 v%d, v%d, v%d" % (dst+2, o+4, o+5))
        e("v_cvt_pk_bf16_f32 v%d, v%d, v%d" % (dst+3, o+6, o+7))
        e("buffer_store_dwordx4 v[%d:%d], v10, s[32:35], s%d offen offset:%d" % (dst, dst+3, 25+b, tp*64))
stamp(6)
if STAMP:
    e("s_waitcnt vmcnt(0)")
stamp(7)
lab("L_end2")
e("s_endpgm")

out += L
out.append('.section .rodata,"a"')
for name in (K1, K2):
    out.append('.p2align 6')
    out.append('.amdhsa_kernel ' + name)
    out.append('  .amdhsa_next_free_vgpr 160')
    out.append('  .amdhsa_next_free_sgpr 64')
    out.append('  .amdhsa_accum_offset 160')
    out.append('  .amdhsa_group_segment_fixed_size 0')
    out.append('  .amdhsa_kernarg_size 64')
    out.append('  .amdhsa_user_sgpr_count 2')
    out.append('  .amdhsa_user_sgpr_kernarg_segment_ptr 1')
    out.append('  .amdhsa_system_sgpr_workgroup_id_x 1')
    out.append('.end_amdhsa_kernel')
open(sys.argv[1], 'w').write('\n'.join(out) + '\n')
```

```python
import sys
BASE = "standalone__low_rank_proj_linformer__prompt"
K1 = BASE + "_kernel"
K2 = BASE + "_p2_kernel"
L = []
def e(s): L.append("    " + s)
def lab(s): L.append(s + ":")
STAMP = len(sys.argv) > 2
def stamp(idx):
    if not STAMP: return
    e("s_memrealtime s[56:57]")
    e("s_waitcnt lgkmcnt(0)")
    e("v_mov_b32 v170, s56")
    e("v_mov_b32 v171, s57")
    e("v_mov_b32 v172, s58")
    e("s_mov_b64 exec, 1")
    e("global_store_dwordx2 v172, v[170:171], s[18:19] offset:%d" % (idx*8))
    e("s_mov_b64 exec, -1")

LDS1 = 8192
hdr = open('standalone__low_rank_proj_linformer__prompt.s.ref').read().split('\n')
out = []
for line in hdr:
    if line.startswith('; @launch'):
        out.append('; @launch kernel=%s grid=(256,1,1) block=(512,1,1) lds=%d' % (K1, LDS1))
        out.append('; @launch kernel=%s grid=(256,1,1) block=(512,1,1) lds=0' % (K2))
        break
    out.append(line)
out.append('.amdgcn_target "amdgcn-amd-amdhsa--gfx950"')
out.append('.text')

def srd(base, lo, hi, size):
    e("s_mov_b32 s%d, s%d" % (base, lo))
    e("s_and_b32 s%d, s%d, 0xffff" % (base+1, hi))
    e("s_mov_b32 s%d, 0x%x" % (base+2, size))
    e("s_mov_b32 s%d, 0x00020000" % (base+3))

def prologue(name, endlab):
    L.append('.globl ' + name)
    L.append('.p2align 8')
    L.append('.type %s,@function' % name)
    L.append(name + ':')
    e("s_cmp_ge_u32 s2, 256")
    e("s_cbranch_scc1 " + endlab)
    e("s_load_dwordx16 s[4:19], s[0:1], 0")
    e("v_and_b32 v1, 63, v0")
    e("v_lshrrev_b32 v2, 4, v1")
    e("v_and_b32 v3, 15, v1")
    e("v_lshrrev_b32 v4, 6, v0")
    e("s_and_b32 s21, s2, 31")
    e("v_readfirstlane_b32 s20, v4")
    e("s_lshr_b32 s22, s2, 5")
    e("s_lshl_b32 s58, s2, 8")
    e("s_add_u32 s58, s58, 0x400000")
    e("s_lshl_b32 s59, s20, 20")
    e("s_add_u32 s58, s58, s59")

prologue(K1, "L_end1")
e("v_lshrrev_b32 v5, 2, v3")
e("v_lshlrev_b32 v5, 3, v5")
e("v_and_b32 v6, 3, v3")
e("v_add_u32 v5, v5, v6")
e("v_lshrrev_b32 v6, 1, v2")
e("v_lshl_add_u32 v5, v6, 2, v5")
e("v_lshlrev_b32 v10, 8, v5")
e("v_and_b32 v6, 1, v2")
e("v_lshl_add_u32 v10, v6, 4, v10")
e("s_lshl_b32 s23, s21, 19")
e("s_lshl_b32 s24, s20, 16")
e("s_add_u32 s23, s23, s24")
e("s_lshl_b32 s24, s22, 5")
e("s_add_u32 s23, s23, s24")
e("v_and_b32 v5, 7, v3")
e("v_lshlrev_b32 v5, 12, v5")
e("v_lshl_add_u32 v5, v2, 4, v5")
e("s_lshl_b32 s27, s20, 9")
e("v_add_u32 v5, s27, v5")
e("v_mov_b32 v6, 0x80000000")
e("v_cmp_gt_u32 vcc, 8, v3")
e("s_waitcnt lgkmcnt(0)")
stamp(0)
e("s_nop 1")
e("v_cndmask_b32 v7, v6, v5, vcc")
e("v_cndmask_b32 v8, v5, v6, vcc")
srd(28, 6, 7, 1<<24)
srd(32, 8, 9, 1<<24)
srd(36, 18, 19, 1<<17)
srd(40, 10, 11, 32768)
srd(44, 12, 13, 32768)
KD = 32; VD = 64; EA = 96; FA = 128
for i in range(8):
    e("s_add_u32 s25, s23, %d" % (i*8192))
    e("buffer_load_dwordx4 v[%d:%d], v10, s[28:31], s25 offen" % (KD+i*4, KD+i*4+3))
    e("buffer_load_dwordx4 v[%d:%d], v7, s[40:43], 0 offen offset:%d" % (EA+i*4, EA+i*4+3, i*64))
for i in range(8):
    e("s_add_u32 s25, s23, %d" % (i*8192))
    e("buffer_load_dwordx4 v[%d:%d], v10, s[32:35], s25 offen" % (VD+i*4, VD+i*4+3))
    e("buffer_load_dwordx4 v[%d:%d], v8, s[44:47], 0 offen offset:%d" % (FA+i*4, FA+i*4+3, i*64))
e("v_lshlrev_b32 v6, 3, v2")
e("v_sub_u32 v6, v3, v6")
e("v_mov_b32 v7, 0x3f80")
e("v_mov_b32 v8, 0x3f800000")
for half in range(2):
    for i in range(4):
        d = 24 + half*4 + i
        e("v_cmp_eq_u32 vcc, %d, v6" % (2*i - 16*half))
        e("v_cmp_eq_u32 s[50:51], %d, v6" % (2*i + 1 - 16*half))
        e("s_nop 1")
        e("v_cndmask_b32 v%d, 0, v7, vcc" % d)
        e("v_cndmask_b32 v9, 0, v8, s[50:51]")
        e("v_or_b32 v%d, v%d, v9" % (d, d))
TMP = 160; BOPR = 12
ACCS = [20, 164]
ACCS = [20, 176]
firstacc = [True, True]
for X in range(2):
    D = KD if X == 0 else VD
    A = EA if X == 0 else FA
    for ip in range(4):
        done = X*16 + (2*ip+2)*2
        e("s_waitcnt vmcnt(%d)" % (32 - done))
        for ii in range(2):
            i = 2*ip + ii
            for half in range(2):
                t = TMP + (ii*2+half)*4
                e("v_mfma_f32_16x16x32_bf16 v[%d:%d], v[%d:%d], v[%d:%d], 0" % (t, t+3, D+i*4, D+i*4+3, 24+half*4, 27+half*4))
        e("s_nop 7")
        for ii in range(2):
            for half in range(2):
                t = TMP + (ii*2+half)*4
                b = BOPR + ii*4 + half*2
                e("v_cvt_pk_bf16_f32 v%d, v%d, v%d" % (b, t, t+1))
                e("v_cvt_pk_bf16_f32 v%d, v%d, v%d" % (b+1, t+2, t+3))
        e("s_nop 1")
        for ii in range(2):
            i = 2*ip + ii
            a = ACCS[ii]
            b = BOPR + ii*4
            e("v_mfma_f32_16x16x32_bf16 v[%d:%d], v[%d:%d], v[%d:%d], %s" % (a, a+3, A+i*4, A+i*4+3, b, b+3, "0" if firstacc[ii] else "v[%d:%d]" % (a, a+3)))
            firstacc[ii] = False
e("v_lshlrev_b32 v5, 4, v0")
e("s_nop 7")
for j in range(4):
    e("v_add_f32 v%d, v%d, v%d" % (20+j, 20+j, 176+j))
stamp(1)
e("ds_write_b128 v5, v[20:23]")
e("s_waitcnt lgkmcnt(0)")
e("s_barrier")
stamp(2)
e("s_cmp_lg_u32 s20, 0")
e("s_cbranch_scc1 L_end1")
for w2 in range(8):
    r = 32 + w2*4
    e("ds_read_b128 v[%d:%d], v5 offset:%d" % (r, r+3, w2*1024))
e("s_lshl_b32 s49, s22, 4")
e("v_add_u32 v8, s49, v3")
e("v_lshlrev_b32 v9, 10, v2")
e("v_lshl_add_u32 v9, v8, 1, v9")
e("v_and_b32 v11, 1, v2")
e("v_lshlrev_b32 v11, 3, v11")
e("v_lshl_add_u32 v11, v8, 4, v11")
e("s_lshl_b32 s48, s21, 12")
for w2 in range(1, 8):
    r = 32 + w2*4
    e("s_waitcnt lgkmcnt(%d)" % (7 - w2))
    for j in range(4):
        e("v_add_f32 v%d, v%d, v%d" % (32+j, 32+j, r+j))
e("v_cvt_pk_bf16_f32 v36, v32, v33")
e("v_cvt_pk_bf16_f32 v37, v34, v35")
e("s_mov_b32 exec_lo, -1")
e("s_mov_b32 exec_hi, 0")
e("buffer_store_short v36, v9, s[36:39], s48 offen")
e("buffer_store_short_d16_hi v36, v9, s[36:39], s48 offen offset:256")
e("buffer_store_short v37, v9, s[36:39], s48 offen offset:512")
e("buffer_store_short_d16_hi v37, v9, s[36:39], s48 offen offset:768")
e("s_mov_b32 exec_lo, 0")
e("s_mov_b32 exec_hi, -1")
e("buffer_store_dwordx2 v[36:37], v11, s[36:39], s48 offen offset:2048")
e("s_mov_b64 exec, -1")
if STAMP:
    e("s_waitcnt vmcnt(0)")
stamp(3)
lab("L_end1")
e("s_endpgm")

prologue(K2, "L_end2")
e("v_lshlrev_b32 v10, 8, v3")
e("v_lshl_add_u32 v10, v2, 4, v10")
e("s_lshl_b32 s23, s21, 19")
e("s_lshl_b32 s24, s22, 16")
e("s_add_u32 s23, s23, s24")
e("s_lshl_b32 s25, s20, 13")
e("s_add_u32 s25, s25, s23")
e("s_add_u32 s26, s25, 4096")
e("v_mov_b32 v7, 0x80000000")
e("v_cmp_gt_u32 vcc, 8, v3")
e("v_lshrrev_b32 v6, 2, v3")
e("v_lshlrev_b32 v6, 3, v6")
e("v_cndmask_b32 v5, v7, v10, vcc")
e("v_and_b32 v8, 3, v3")
e("v_add_u32 v6, v6, v8")
e("v_lshlrev_b32 v6, 4, v6")
e("v_lshl_add_u32 v6, v2, 3, v6")
e("v_cmp_gt_u32 vcc, 2, v2")
e("s_lshl_b32 s48, s21, 12")
e("v_nop")
e("v_cndmask_b32 v6, v7, v6, vcc")
e("s_waitcnt lgkmcnt(0)")
stamp(4)
srd(28, 4, 5, 1<<24)
srd(32, 14, 15, 1<<24)
srd(36, 18, 19, 1<<17)
KPA = 96; VPA = 112; O = 128; Q = 32
for c in range(4):
    e("buffer_load_dwordx4 v[%d:%d], v5, s[36:39], s48 offen offset:%d" % (KPA+c*4, KPA+c*4+3, c*64))
for blk in range(2):
    for c in range(4):
        r = Q + blk*16 + c*4
        e("buffer_load_dwordx4 v[%d:%d], v10, s[28:31], s%d offen offset:%d" % (r, r+3, 25+blk, c*64))
for t in range(8):
    e("buffer_load_dwordx2 v[%d:%d], v6, s[36:39], s48 offen offset:%d" % (VPA+t*2, VPA+t*2+1, 2048 + (t>>1)*512 + (t&1)*64))
e("s_mov_b32 s50, 0x3db504f3")
e("s_mov_b32 s51, 0x3fb8aa3b")
e("s_mov_b32 s52, 0xffff0000")
SS = [12, 64]; TT = [16, 68]
e("s_waitcnt vmcnt(12)")
for c in range(4):
    r = Q + c*4
    S = SS[0]
    e("v_mfma_f32_16x16x32_bf16 v[%d:%d], v[%d:%d], v[%d:%d], %s" % (S, S+3, KPA+c*4, KPA+c*4+3, r, r+3, "0" if c == 0 else "v[%d:%d]" % (S, S+3)))
e("s_waitcnt vmcnt(8)")
for c in range(4):
    r = Q + 16 + c*4
    S = SS[1]
    e("v_mfma_f32_16x16x32_bf16 v[%d:%d], v[%d:%d], v[%d:%d], %s" % (S, S+3, KPA+c*4, KPA+c*4+3, r, r+3, "0" if c == 0 else "v[%d:%d]" % (S, S+3)))
stamp(5)
e("s_nop 7")
def both(fn):
    for b in range(2):
        fn(SS[b], TT[b])
def rnd(S, T):
    e("v_cvt_pk_bf16_f32 v%d, v%d, v%d" % (T, S, S+1))
    e("v_cvt_pk_bf16_f32 v%d, v%d, v%d" % (T+1, S+2, S+3))
    e("v_lshlrev_b32 v%d, 16, v%d" % (S, T))
    e("v_and_b32 v%d, s52, v%d" % (S+1, T))
    e("v_lshlrev_b32 v%d, 16, v%d" % (S+2, T+1))
    e("v_and_b32 v%d, s52, v%d" % (S+3, T+1))
both(rnd)
def scl(S, T):
    for j in range(4): e("v_mul_f32 v%d, s50, v%d" % (S+j, S+j))
both(scl)
both(rnd)
def mx(S, T):
    e("v_max_f32 v%d, v%d, v%d" % (T, S, S+1))
    e("v_max3_f32 v%d, v%d, v%d, v%d" % (T, T, S+2, S+3))
    e("v_mov_b32 v%d, v%d" % (T+1, T))
both(mx)
e("s_nop 1")
def sw(S, T):
    e("v_permlane16_swap_b32 v%d, v%d" % (T, T+1))
both(sw)
def mx2(S, T):
    e("v_max_f32 v%d, v%d, v%d" % (T, T, T+1))
    for j in range(4): e("v_sub_f32 v%d, v%d, v%d" % (S+j, S+j, T))
    for j in range(4): e("v_mul_f32 v%d, s51, v%d" % (S+j, S+j))
    for j in range(4): e("v_exp_f32 v%d, v%d" % (S+j, S+j))
both(mx2)
def sm(S, T):
    e("v_add_f32 v%d, v%d, v%d" % (T, S, S+1))
    e("v_add_f32 v%d, v%d, v%d" % (T+1, S+2, S+3))
    e("v_add_f32 v%d, v%d, v%d" % (T, T, T+1))
    e("v_mov_b32 v%d, v%d" % (T+1, T))
both(sm)
e("s_nop 1")
both(sw)
def sm2(S, T):
    e("v_add_f32 v%d, v%d, v%d" % (T, T, T+1))
    e("v_rcp_f32 v%d, v%d" % (T, T))
both(sm2)
def nrm(S, T):
    for j in range(4): e("v_mul_f32 v%d, v%d, v%d" % (S+j, S+j, T))
    e("v_cvt_pk_bf16_f32 v%d, v%d, v%d" % (T+2, S, S+1))
    e("v_cvt_pk_bf16_f32 v%d, v%d, v%d" % (T+3, S+2, S+3))
both(nrm)
e("s_waitcnt vmcnt(0)")
for b in range(2):
    T = TT[b]
    for t in range(8):
        o = O + t*4
        e("v_mfma_f32_16x16x16_bf16 v[%d:%d], v[%d:%d], v[%d:%d], 0" % (o, o+3, VPA+t*2, VPA+t*2+1, T+2, T+3))
    e("s_nop 7")
    for tp in range(4):
        o = O + tp*8
        dst = Q + b*16 + tp*4
        e("v_cvt_pk_bf16_f32 v%d, v%d, v%d" % (dst, o, o+1))
        e("v_cvt_pk_bf16_f32 v%d, v%d, v%d" % (dst+1, o+2, o+3))
        e("v_cvt_pk_bf16_f32 v%d, v%d, v%d" % (dst+2, o+4, o+5))
        e("v_cvt_pk_bf16_f32 v%d, v%d, v%d" % (dst+3, o+6, o+7))
        e("buffer_store_dwordx4 v[%d:%d], v10, s[32:35], s%d offen offset:%d" % (dst, dst+3, 25+b, tp*64))
stamp(6)
if STAMP:
    e("s_waitcnt vmcnt(0)")
stamp(7)
lab("L_end2")
e("s_endpgm")

out += L
out.append('.section .rodata,"a"')
for name in (K1, K2):
    out.append('.p2align 6')
    out.append('.amdhsa_kernel ' + name)
    out.append('  .amdhsa_next_free_vgpr 184')
    out.append('  .amdhsa_next_free_sgpr 64')
    out.append('  .amdhsa_accum_offset 184')
    out.append('  .amdhsa_group_segment_fixed_size 0')
    out.append('  .amdhsa_kernarg_size 64')
    out.append('  .amdhsa_user_sgpr_count 2')
    out.append('  .amdhsa_user_sgpr_kernarg_segment_ptr 1')
    out.append('  .amdhsa_system_sgpr_workgroup_id_x 1')
    out.append('.end_amdhsa_kernel')
open(sys.argv[1], 'w').write('\n'.join(out) + '\n')
```

```python
import sys
NAME = "standalone__low_rank_proj_linformer__prompt_kernel"
QWHEN = int(sys.argv[2])
FORCE_SLOW = int(sys.argv[3])
STAMP = len(sys.argv) > 4
L = []
def e(s): L.append("    " + s)
def lab(s): L.append(s + ":")
def stamp(idx):
    if not STAMP: return
    e("s_memrealtime s[56:57]")
    e("s_waitcnt lgkmcnt(0)")
    e("v_mov_b32 v160, s56")
    e("v_mov_b32 v161, s57")
    e("v_mov_b32 v162, s58")
    e("s_mov_b64 exec, 1")
    e("global_store_dwordx2 v162, v[160:161], s[18:19] offset:%d" % (idx*8))
    e("s_mov_b64 exec, -1")

LDS_KP = 0
LDS_VP = 4096
LDS_DEC = 6144
LDS_RED = 8192
LDS_TOTAL = 65536 + 8192

hdr = open('standalone__low_rank_proj_linformer__prompt.s.ref').read().split('\n')
out = []
for line in hdr:
    if line.startswith('; @launch'):
        out.append('; @launch grid=(256,1,1) block=(768,1,1) lds=%d' % LDS_TOTAL)
        break
    out.append(line)
out.append('.amdgcn_target "amdgcn-amd-amdhsa--gfx950"')
out.append('.text')
out.append('.globl ' + NAME)
out.append('.p2align 8')
out.append('.type %s,@function' % NAME)
out.append(NAME + ':')

def srd(base, lo, hi, size):
    e("s_mov_b32 s%d, s%d" % (base, lo))
    e("s_and_b32 s%d, s%d, 0xffff" % (base+1, hi))
    e("s_mov_b32 s%d, 0x%x" % (base+2, size))
    e("s_mov_b32 s%d, 0x00020000" % (base+3))

e("s_cmp_ge_u32 s2, 256")
e("s_cbranch_scc1 L_end")
e("s_load_dwordx16 s[4:19], s[0:1], 0")
e("v_and_b32 v1, 63, v0")
e("v_lshrrev_b32 v2, 4, v1")
e("v_and_b32 v3, 15, v1")
e("v_lshrrev_b32 v4, 6, v0")
e("s_and_b32 s21, s2, 31")
e("v_readfirstlane_b32 s20, v4")
e("s_lshr_b32 s22, s2, 5")
e("s_lshl_b32 s23, s21, 19")
e("v_lshlrev_b32 v10, 8, v3")
e("v_lshl_add_u32 v10, v2, 4, v10")
if STAMP:
    e("s_lshl_b32 s58, s2, 8")
    e("s_add_u32 s58, s58, 0x400000")
    e("s_lshl_b32 s59, s20, 20")
    e("s_add_u32 s58, s58, s59")
e("s_waitcnt lgkmcnt(0)")
stamp(0)
e("s_cmp_ge_u32 s20, 8")
e("s_cbranch_scc1 L_qwave")

srd(28, 6, 7, 1<<24)
srd(32, 8, 9, 1<<24)
srd(36, 18, 19, 1<<21)
srd(40, 10, 11, 32768)
srd(44, 12, 13, 32768)
e("s_lshl_b32 s24, s20, 13")
e("s_add_u32 s23, s23, s24")
e("s_lshl_b32 s24, s20, 6")
e("v_and_b32 v5, 7, v3")
e("v_lshlrev_b32 v5, 12, v5")
e("v_lshl_add_u32 v5, v2, 3, v5")
e("v_mov_b32 v6, 0x80000000")
e("v_cmp_gt_u32 vcc, 8, v3")
e("s_mov_b32 s62, s22")
e("s_mov_b32 s63, 0")
e("v_cndmask_b32 v7, v6, v5, vcc")
e("v_cndmask_b32 v8, v5, v6, vcc")
lab("L_issue")
e("s_lshl_b32 s25, s62, 16")
e("s_add_u32 s25, s25, s23")
e("s_add_u32 s26, s25, 4096")
e("s_lshl_b32 s27, s62, 9")
e("s_add_u32 s27, s27, s24")
for X, (srdb, base) in enumerate([(28, 32), (32, 64)]):
    for b in range(2):
        for c in range(4):
            r = base + b*16 + c*4
            e("buffer_load_dwordx4 v[%d:%d], v10, s[%d:%d], s%d offen offset:%d" % (r, r+3, srdb, srdb+3, 25+b, c*64))
    if X == 0:
        e("buffer_load_dwordx2 v[16:17], v7, s[40:43], s27 offen")
        e("buffer_load_dwordx2 v[18:19], v7, s[40:43], s27 offen offset:32")
        e("buffer_load_dwordx2 v[20:21], v8, s[44:47], s27 offen")
        e("buffer_load_dwordx2 v[22:23], v8, s[44:47], s27 offen offset:32")
e("s_cmp_lg_u32 s63, 0")
e("s_cbranch_scc1 L_compute")
e("v_lshlrev_b32 v6, 3, v2")
e("v_sub_u32 v6, v3, v6")
e("v_mov_b32 v11, 0x3f80")
e("v_mov_b32 v12, 0x3f800000")
for half in range(2):
    for i in range(4):
        d = 24 + half*4 + i
        e("v_cmp_eq_u32 vcc, %d, v6" % (2*i - 16*half))
        e("v_cmp_eq_u32 s[50:51], %d, v6" % (2*i + 1 - 16*half))
        e("s_nop 1")
        e("v_cndmask_b32 v%d, 0, v11, vcc" % d)
        e("v_cndmask_b32 v9, 0, v12, s[50:51]")
        e("v_or_b32 v%d, v%d, v9" % (d, d))
ACC = 96; TMP = 128; BOP = 144
for i in range(32):
    e("v_mov_b32 v%d, 0" % (ACC+i))
lab("L_compute")
waits = {(0,0): 16, (0,1): 8, (1,0): 4, (1,1): 0}
for X in range(2):
    base = 32 + X*32
    A = 16 + X*4
    for b in range(2):
        e("s_waitcnt vmcnt(%d)" % waits[(X,b)])
        for hb in range(2):
            for cc in range(2):
                c = hb*2 + cc
                r = base + b*16 + c*4
                for half in range(2):
                    t = TMP + (cc*2+half)*4
                    e("v_mfma_f32_16x16x32_bf16 v[%d:%d], v[%d:%d], v[%d:%d], 0" % (t, t+3, r, r+3, 24+half*4, 27+half*4))
            e("s_nop 7")
            for cc in range(2):
                c = hb*2 + cc
                for half in range(2):
                    t = TMP + (cc*2+half)*4
                    tile = c*2 + half
                    e("v_cvt_pk_bf16_f32 v%d, v%d, v%d" % (BOP+tile*2, t, t+1))
                    e("v_cvt_pk_bf16_f32 v%d, v%d, v%d" % (BOP+tile*2+1, t+2, t+3))
        if (X, b) == (0, 0):
            e("s_waitcnt vmcnt(8)")
        e("s_nop 1")
        for tile in range(8):
            a = ACC + tile*4
            e("v_mfma_f32_16x16x16_bf16 v[%d:%d], v[%d:%d], v[%d:%d], v[%d:%d]" % (a, a+3, A+b*2, A+b*2+1, BOP+tile*2, BOP+tile*2+1, a, a+3))
e("s_cmp_eq_u32 s63, 0")
e("s_cbranch_scc1 L_reduce")
e("s_cmp_eq_u32 s63, 7")
e("s_cbranch_scc1 L_reduce")
e("s_add_u32 s63, s63, 1")
e("s_add_u32 s62, s62, 1")
e("s_and_b32 s62, s62, 7")
e("s_branch L_issue")
lab("L_reduce")
e("v_lshlrev_b32 v5, 4, v1")
e("v_add_u32 v5, %d, v5" % LDS_RED)
e("s_lshl_b32 s48, s20, 13")
e("v_add_u32 v6, s48, v5")
e("s_nop 4")
stamp(1)
for tile in range(8):
    a = ACC + tile*4
    e("ds_write_b128 v6, v[%d:%d] offset:%d" % (a, a+3, tile*1024))
e("s_waitcnt lgkmcnt(0)")
e("s_barrier")
stamp(2)
e("s_lshl_b32 s48, s20, 10")
e("v_add_u32 v6, s48, v5")
for w2 in range(8):
    r = 32 + w2*4
    e("ds_read_b128 v[%d:%d], v6 offset:%d" % (r, r+3, w2*8192))
e("v_lshlrev_b32 v7, 4, v0")
for w2 in range(1, 8):
    r = 32 + w2*4
    e("s_waitcnt lgkmcnt(%d)" % (7 - w2))
    for j in range(4):
        e("v_add_f32 v%d, v%d, v%d" % (32+j, 32+j, r+j))
e("s_cmp_lg_u32 s63, 0")
e("s_cbranch_scc1 L_final")
e("s_lshl_b32 s48, s21, 16")
e("s_lshl_b32 s49, s22, 13")
e("s_add_u32 s49, s49, s48")
e("buffer_store_dwordx4 v[32:35], v7, s[36:39], s49 offen")
e("s_waitcnt vmcnt(0)")
stamp(3)
e("s_barrier")
e("s_cmp_lg_u32 s20, 0")
e("s_cbranch_scc1 L_nopoll")
e("s_getreg_b32 s52, hwreg(HW_REG_XCC_ID, 0, 4)")
e("s_add_u32 s52, s52, 1")
e("s_lshl_b32 s49, s21, 3")
e("v_mov_b32 v8, s49")
e("s_add_u32 s49, s49, s22")
e("v_mov_b32 v11, s49")
e("v_mov_b32 v9, s52")
e("s_mul_i32 s52, s52, 0x01010101")
e("s_mov_b64 exec, 1")
e("global_store_byte v11, v9, s[16:17]")
e("s_mov_b64 exec, -1")
e("s_mov_b32 s50, 0")
e("v_mov_b32 v14, 0")
lab("L_poll")
e("global_load_dwordx2 v[12:13], v8, s[16:17] sc1")
e("s_waitcnt vmcnt(0)")
e("v_readfirstlane_b32 s54, v12")
e("v_readfirstlane_b32 s55, v13")
e("s_add_u32 s50, s50, 1")
e("s_xor_b32 s54, s54, s52")
e("s_xor_b32 s55, s55, s52")
e("s_or_b32 s54, s54, s55")
if FORCE_SLOW:
    e("s_mov_b32 s54, 1")
e("s_cmp_eq_u32 s54, 0")
e("s_cbranch_scc1 L_decided")
e("s_cmp_lt_u32 s50, %d" % (3 if FORCE_SLOW else 150))
e("s_cbranch_scc0 L_timeout")
e("s_sleep 1")
e("s_branch L_poll")
lab("L_timeout")
e("v_mov_b32 v14, 1")
lab("L_decided")
e("v_mov_b32 v15, %d" % LDS_DEC)
e("ds_write_b32 v15, v14")
e("s_waitcnt lgkmcnt(0)")
lab("L_nopoll")
stamp(4)
e("s_barrier")
e("v_mov_b32 v15, %d" % LDS_DEC)
e("ds_read_b32 v14, v15")
e("s_waitcnt lgkmcnt(0)")
e("v_readfirstlane_b32 s50, v14")
e("s_cmp_eq_u32 s50, 0")
e("s_cbranch_scc1 L_gather")
e("v_and_b32 v5, 7, v3")
e("v_lshlrev_b32 v5, 12, v5")
e("v_lshl_add_u32 v5, v2, 3, v5")
e("v_mov_b32 v6, 0x80000000")
e("v_cmp_gt_u32 vcc, 8, v3")
e("s_mov_b32 s63, 1")
e("s_add_u32 s62, s62, 1")
e("s_and_b32 s62, s62, 7")
e("v_cndmask_b32 v7, v6, v5, vcc")
e("v_cndmask_b32 v8, v5, v6, vcc")
e("s_branch L_issue")
lab("L_gather")
for s2 in range(8):
    r = 32 + s2*4
    e("s_add_u32 s49, s48, %d" % (s2*8192))
    e("buffer_load_dwordx4 v[%d:%d], v7, s[36:39], s49 offen sc1" % (r, r+3))
for s2 in range(1, 8):
    r = 32 + s2*4
    e("s_waitcnt vmcnt(%d)" % (7 - s2))
    for j in range(4):
        e("v_add_f32 v%d, v%d, v%d" % (32+j, 32+j, r+j))
lab("L_final")
stamp(5)
e("v_cvt_pk_bf16_f32 v36, v32, v33")
e("v_cvt_pk_bf16_f32 v37, v34, v35")
e("s_lshl_b32 s49, s20, 4")
e("v_add_u32 v8, s49, v3")
e("v_lshlrev_b32 v9, 10, v2")
e("v_lshl_add_u32 v9, v8, 1, v9")
e("v_and_b32 v11, 1, v2")
e("v_lshlrev_b32 v11, 3, v11")
e("v_lshl_add_u32 v11, v8, 4, v11")
e("s_mov_b32 exec_lo, -1")
e("s_mov_b32 exec_hi, 0")
e("ds_write_b16 v9, v36 offset:%d" % (LDS_KP))
e("ds_write_b16_d16_hi v9, v36 offset:%d" % (LDS_KP+256))
e("ds_write_b16 v9, v37 offset:%d" % (LDS_KP+512))
e("ds_write_b16_d16_hi v9, v37 offset:%d" % (LDS_KP+768))
e("s_mov_b32 exec_lo, 0")
e("s_mov_b32 exec_hi, -1")
e("ds_write_b64 v11, v[36:37] offset:%d" % (LDS_VP))
e("s_mov_b64 exec, -1")
e("s_waitcnt lgkmcnt(0)")
e("s_barrier")
e("s_endpgm")

lab("L_qwave")
srd(28, 4, 5, 1<<24)
srd(32, 14, 15, 1<<24)
e("s_lshl_b32 s24, s22, 16")
e("s_add_u32 s23, s23, s24")
e("s_sub_u32 s25, s20, 8")
e("s_lshl_b32 s25, s25, 14")
e("s_add_u32 s25, s25, s23")
Q = 32
def qloads():
    for blk in range(4):
        e("s_add_u32 s26, s25, %d" % (blk*4096))
        for c in range(4):
            r = Q + blk*16 + c*4
            e("buffer_load_dwordx4 v[%d:%d], v10, s[28:31], s26 offen offset:%d" % (r, r+3, c*64))
if QWHEN == 0: qloads()
e("v_subrev_u32 v5, 512, v0")
e("v_lshlrev_b32 v5, 3, v5")
e("v_mov_b32 v6, 0")
e("v_mov_b32 v7, 0")
e("ds_write_b64 v5, v[6:7] offset:%d" % (LDS_KP + 2048))
e("s_waitcnt lgkmcnt(0)")
e("s_barrier")
if QWHEN == 1: qloads()
e("v_mov_b32 v5, v10")
e("v_lshrrev_b32 v6, 2, v3")
e("v_lshlrev_b32 v6, 3, v6")
e("v_and_b32 v7, 3, v3")
e("v_add_u32 v6, v6, v7")
e("v_lshlrev_b32 v6, 4, v6")
e("v_and_b32 v7, 1, v2")
e("v_lshl_add_u32 v6, v7, 3, v6")
e("v_cmp_gt_u32 vcc, 2, v2")
e("s_mov_b32 s50, 0x3db504f3")
e("s_mov_b32 s51, 0x3fb8aa3b")
e("s_mov_b32 s52, 0xffff0000")
e("v_mov_b32 v8, %d" % LDS_DEC)
e("s_barrier")
e("s_barrier")
e("ds_read_b32 v9, v8")
e("s_waitcnt lgkmcnt(0)")
e("v_readfirstlane_b32 s53, v9")
e("s_cmp_eq_u32 s53, 0")
e("s_cbranch_scc1 L_qfast")
e("s_barrier")
lab("L_qfast")
e("s_barrier")
stamp(6)
KPA = 96; VPA = 112; O = 128
for c in range(4):
    e("ds_read_b128 v[%d:%d], v5 offset:%d" % (KPA+c*4, KPA+c*4+3, LDS_KP + c*64))
for t in range(8):
    e("ds_read_b64 v[%d:%d], v6 offset:%d" % (VPA+t*2, VPA+t*2+1, LDS_VP + (t>>1)*512 + (t&1)*64))
e("s_waitcnt lgkmcnt(0)")
for t in range(16):
    e("v_cndmask_b32 v%d, 0, v%d, vcc" % (VPA+t, VPA+t))
SS = [12, 20]; TT = [16, 24]
def both(fn):
    for b in range(2):
        fn(SS[b], TT[b])
def rnd(S, T):
    e("v_cvt_pk_bf16_f32 v%d, v%d, v%d" % (T, S, S+1))
    e("v_cvt_pk_bf16_f32 v%d, v%d, v%d" % (T+1, S+2, S+3))
    e("v_lshlrev_b32 v%d, 16, v%d" % (S, T))
    e("v_and_b32 v%d, s52, v%d" % (S+1, T))
    e("v_lshlrev_b32 v%d, 16, v%d" % (S+2, T+1))
    e("v_and_b32 v%d, s52, v%d" % (S+3, T+1))
def scl(S, T):
    for j in range(4): e("v_mul_f32 v%d, s50, v%d" % (S+j, S+j))
def mx(S, T):
    e("v_max_f32 v%d, v%d, v%d" % (T, S, S+1))
    e("v_max3_f32 v%d, v%d, v%d, v%d" % (T, T, S+2, S+3))
    e("v_mov_b32 v%d, v%d" % (T+1, T))
def sw(S, T):
    e("v_permlane16_swap_b32 v%d, v%d" % (T, T+1))
def mx2(S, T):
    e("v_max_f32 v%d, v%d, v%d" % (T, T, T+1))
    for j in range(4): e("v_sub_f32 v%d, v%d, v%d" % (S+j, S+j, T))
    for j in range(4): e("v_mul_f32 v%d, s51, v%d" % (S+j, S+j))
    for j in range(4): e("v_exp_f32 v%d, v%d" % (S+j, S+j))
def sm(S, T):
    e("v_add_f32 v%d, v%d, v%d" % (T, S, S+1))
    e("v_add_f32 v%d, v%d, v%d" % (T+1, S+2, S+3))
    e("v_add_f32 v%d, v%d, v%d" % (T, T, T+1))
    e("v_mov_b32 v%d, v%d" % (T+1, T))
def sm2(S, T):
    e("v_add_f32 v%d, v%d, v%d" % (T, T, T+1))
    e("v_rcp_f32 v%d, v%d" % (T, T))
def nrm(S, T):
    for j in range(4): e("v_mul_f32 v%d, v%d, v%d" % (S+j, S+j, T))
    e("v_cvt_pk_bf16_f32 v%d, v%d, v%d" % (T+2, S, S+1))
    e("v_cvt_pk_bf16_f32 v%d, v%d, v%d" % (T+3, S+2, S+3))
for pair in range(2):
    ws = [12, 8] if pair == 0 else [12, 8]
    if STAMP: ws = [w for w in ws]
    for b in range(2):
        blk = pair*2 + b
        e("s_waitcnt vmcnt(%d)" % ((3-blk)*4 + pair*8))
        S = SS[b]
        for c in range(4):
            r = Q + blk*16 + c*4
            e("v_mfma_f32_16x16x32_bf16 v[%d:%d], v[%d:%d], v[%d:%d], %s" % (S, S+3, KPA+c*4, KPA+c*4+3, r, r+3, "0" if c == 0 else "v[%d:%d]" % (S, S+3)))
    e("s_nop 7")
    both(rnd); both(scl); both(rnd); both(mx)
    e("s_nop 1")
    both(sw); both(mx2); both(sm)
    e("s_nop 1")
    both(sw); both(sm2); both(nrm)
    e("s_nop 1")
    for b in range(2):
        blk = pair*2 + b
        T = TT[b]
        for t in range(8):
            o = O + t*4
            e("v_mfma_f32_16x16x16_bf16 v[%d:%d], v[%d:%d], v[%d:%d], 0" % (o, o+3, VPA+t*2, VPA+t*2+1, T+2, T+3))
        e("s_add_u32 s26, s25, %d" % (blk*4096))
        e("s_nop 6")
        for tp in range(4):
            o = O + tp*8
            dst = Q + blk*16 + tp*4
            e("v_cvt_pk_bf16_f32 v%d, v%d, v%d" % (dst, o, o+1))
            e("v_cvt_pk_bf16_f32 v%d, v%d, v%d" % (dst+1, o+2, o+3))
            e("v_cvt_pk_bf16_f32 v%d, v%d, v%d" % (dst+2, o+4, o+5))
            e("v_cvt_pk_bf16_f32 v%d, v%d, v%d" % (dst+3, o+6, o+7))
            e("buffer_store_dwordx4 v[%d:%d], v10, s[32:35], s26 offen offset:%d" % (dst, dst+3, tp*64))
stamp(7)
if STAMP:
    e("s_waitcnt vmcnt(0)")
stamp(8)
lab("L_end")
e("s_endpgm")

out += L
out.append('.section .rodata,"a"')
out.append('.p2align 6')
out.append('.amdhsa_kernel ' + NAME)
out.append('  .amdhsa_next_free_vgpr 168')
out.append('  .amdhsa_next_free_sgpr 72')
out.append('  .amdhsa_accum_offset 168')
out.append('  .amdhsa_group_segment_fixed_size 0')
out.append('  .amdhsa_kernarg_size 64')
out.append('  .amdhsa_user_sgpr_count 2')
out.append('  .amdhsa_user_sgpr_kernarg_segment_ptr 1')
out.append('  .amdhsa_system_sgpr_workgroup_id_x 1')
out.append('.end_amdhsa_kernel')
open(sys.argv[1], 'w').write('\n'.join(out) + '\n')
```

```python
import sys
NAME = "standalone__low_rank_proj_linformer__prompt_kernel"
QWHEN = int(sys.argv[2])
FORCE_SLOW = int(sys.argv[3])
STAMP = len(sys.argv) > 4
import os
NTL = " nt" if os.environ.get("NTL") else ""
NTS = " nt" if os.environ.get("NTS") else ""
L = []
def e(s): L.append("    " + s)
def lab(s): L.append(s + ":")
def stamp(idx):
    if not STAMP: return
    e("s_memrealtime s[56:57]")
    e("s_waitcnt lgkmcnt(0)")
    e("v_mov_b32 v160, s56")
    e("v_mov_b32 v161, s57")
    e("v_mov_b32 v162, s58")
    e("s_mov_b64 exec, 1")
    e("global_store_dwordx2 v162, v[160:161], s[18:19] offset:%d" % (idx*8))
    e("s_mov_b64 exec, -1")

LDS_KP = 0
LDS_VP = 4096
LDS_DEC = 6144
LDS_RED = 8192
LDS_TOTAL = 65536 + 8192

hdr = open('standalone__low_rank_proj_linformer__prompt.s.ref').read().split('\n')
out = []
for line in hdr:
    if line.startswith('; @launch'):
        out.append('; @launch grid=(256,1,1) block=(768,1,1) lds=%d' % LDS_TOTAL)
        break
    out.append(line)
out.append('.amdgcn_target "amdgcn-amd-amdhsa--gfx950"')
out.append('.text')
out.append('.globl ' + NAME)
out.append('.p2align 8')
out.append('.type %s,@function' % NAME)
out.append(NAME + ':')

def srd(base, lo, hi, size):
    e("s_mov_b32 s%d, s%d" % (base, lo))
    e("s_and_b32 s%d, s%d, 0xffff" % (base+1, hi))
    e("s_mov_b32 s%d, 0x%x" % (base+2, size))
    e("s_mov_b32 s%d, 0x00020000" % (base+3))

e("s_cmp_ge_u32 s2, 256")
e("s_cbranch_scc1 L_end")
e("s_load_dwordx16 s[4:19], s[0:1], 0")
e("v_and_b32 v1, 63, v0")
e("v_lshrrev_b32 v2, 4, v1")
e("v_and_b32 v3, 15, v1")
e("v_lshrrev_b32 v4, 6, v0")
e("s_and_b32 s21, s2, 31")
e("v_readfirstlane_b32 s20, v4")
e("s_lshr_b32 s22, s2, 5")
e("s_lshl_b32 s23, s21, 19")
e("v_lshlrev_b32 v10, 8, v3")
e("v_lshl_add_u32 v10, v2, 4, v10")
if STAMP:
    e("s_lshl_b32 s58, s2, 8")
    e("s_add_u32 s58, s58, 0x400000")
    e("s_lshl_b32 s59, s20, 20")
    e("s_add_u32 s58, s58, s59")
e("s_waitcnt lgkmcnt(0)")
stamp(0)
e("s_cmp_ge_u32 s20, 8")
e("s_cbranch_scc1 L_qwave")

srd(28, 6, 7, 1<<24)
srd(32, 8, 9, 1<<24)
srd(36, 18, 19, 1<<21)
srd(40, 10, 11, 32768)
srd(44, 12, 13, 32768)
e("s_lshl_b32 s24, s20, 13")
e("s_add_u32 s23, s23, s24")
e("s_lshl_b32 s24, s20, 6")
e("v_and_b32 v5, 7, v3")
e("v_lshlrev_b32 v5, 12, v5")
e("v_lshl_add_u32 v5, v2, 3, v5")
e("v_mov_b32 v6, 0x80000000")
e("v_cmp_gt_u32 vcc, 8, v3")
e("s_mov_b32 s62, s22")
e("s_mov_b32 s63, 0")
e("v_cndmask_b32 v7, v6, v5, vcc")
e("v_cndmask_b32 v8, v5, v6, vcc")
lab("L_issue")
e("s_lshl_b32 s25, s62, 16")
e("s_add_u32 s25, s25, s23")
e("s_add_u32 s26, s25, 4096")
e("s_lshl_b32 s27, s62, 9")
e("s_add_u32 s27, s27, s24")
for X, (srdb, base) in enumerate([(28, 32), (32, 64)]):
    for b in range(2):
        for c in range(4):
            r = base + b*16 + c*4
            e("buffer_load_dwordx4 v[%d:%d], v10, s[%d:%d], s%d offen offset:%d" % (r, r+3, srdb, srdb+3, 25+b, c*64) + NTL)
    if X == 0:
        e("buffer_load_dwordx2 v[16:17], v7, s[40:43], s27 offen")
        e("buffer_load_dwordx2 v[18:19], v7, s[40:43], s27 offen offset:32")
        e("buffer_load_dwordx2 v[20:21], v8, s[44:47], s27 offen")
        e("buffer_load_dwordx2 v[22:23], v8, s[44:47], s27 offen offset:32")
e("s_cmp_lg_u32 s63, 0")
e("s_cbranch_scc1 L_compute")
e("v_lshlrev_b32 v6, 3, v2")
e("v_sub_u32 v6, v3, v6")
e("v_mov_b32 v11, 0x3f80")
e("v_mov_b32 v12, 0x3f800000")
for half in range(2):
    for i in range(4):
        d = 24 + half*4 + i
        e("v_cmp_eq_u32 vcc, %d, v6" % (2*i - 16*half))
        e("v_cmp_eq_u32 s[50:51], %d, v6" % (2*i + 1 - 16*half))
        e("s_nop 1")
        e("v_cndmask_b32 v%d, 0, v11, vcc" % d)
        e("v_cndmask_b32 v9, 0, v12, s[50:51]")
        e("v_or_b32 v%d, v%d, v9" % (d, d))
ACC = 96; TMP = 128; BOP = 144
for i in range(32):
    e("v_mov_b32 v%d, 0" % (ACC+i))
lab("L_compute")
waits = {(0,0): 16, (0,1): 8, (1,0): 4, (1,1): 0}
for X in range(2):
    base = 32 + X*32
    A = 16 + X*4
    for b in range(2):
        e("s_waitcnt vmcnt(%d)" % waits[(X,b)])
        for hb in range(2):
            for cc in range(2):
                c = hb*2 + cc
                r = base + b*16 + c*4
                for half in range(2):
                    t = TMP + (cc*2+half)*4
                    e("v_mfma_f32_16x16x32_bf16 v[%d:%d], v[%d:%d], v[%d:%d], 0" % (t, t+3, r, r+3, 24+half*4, 27+half*4))
            e("s_nop 7")
            for cc in range(2):
                c = hb*2 + cc
                for half in range(2):
                    t = TMP + (cc*2+half)*4
                    tile = c*2 + half
                    e("v_cvt_pk_bf16_f32 v%d, v%d, v%d" % (BOP+tile*2, t, t+1))
                    e("v_cvt_pk_bf16_f32 v%d, v%d, v%d" % (BOP+tile*2+1, t+2, t+3))
        if (X, b) == (0, 0):
            e("s_waitcnt vmcnt(8)")
        e("s_nop 1")
        for tile in range(8):
            a = ACC + tile*4
            e("v_mfma_f32_16x16x16_bf16 v[%d:%d], v[%d:%d], v[%d:%d], v[%d:%d]" % (a, a+3, A+b*2, A+b*2+1, BOP+tile*2, BOP+tile*2+1, a, a+3))
e("s_cmp_eq_u32 s63, 0")
e("s_cbranch_scc1 L_reduce")
e("s_cmp_eq_u32 s63, 7")
e("s_cbranch_scc1 L_reduce")
e("s_add_u32 s63, s63, 1")
e("s_add_u32 s62, s62, 1")
e("s_and_b32 s62, s62, 7")
e("s_branch L_issue")
lab("L_reduce")
e("v_lshlrev_b32 v5, 4, v1")
e("v_add_u32 v5, %d, v5" % LDS_RED)
e("s_lshl_b32 s48, s20, 13")
e("v_add_u32 v6, s48, v5")
e("s_nop 4")
stamp(1)
for tile in range(8):
    a = ACC + tile*4
    e("ds_write_b128 v6, v[%d:%d] offset:%d" % (a, a+3, tile*1024))
e("s_waitcnt lgkmcnt(0)")
e("s_barrier")
stamp(2)
e("s_lshl_b32 s48, s20, 10")
e("v_add_u32 v6, s48, v5")
for w2 in range(8):
    r = 32 + w2*4
    e("ds_read_b128 v[%d:%d], v6 offset:%d" % (r, r+3, w2*8192))
e("v_lshlrev_b32 v7, 4, v0")
for w2 in range(1, 8):
    r = 32 + w2*4
    e("s_waitcnt lgkmcnt(%d)" % (7 - w2))
    for j in range(4):
        e("v_add_f32 v%d, v%d, v%d" % (32+j, 32+j, r+j))
e("s_cmp_lg_u32 s63, 0")
e("s_cbranch_scc1 L_final")
e("s_lshl_b32 s48, s21, 16")
e("s_lshl_b32 s49, s22, 13")
e("s_add_u32 s49, s49, s48")
e("buffer_store_dwordx4 v[32:35], v7, s[36:39], s49 offen")
e("s_waitcnt vmcnt(0)")
stamp(3)
e("s_barrier")
e("s_cmp_lg_u32 s20, 0")
e("s_cbranch_scc1 L_nopoll")
e("s_getreg_b32 s52, hwreg(HW_REG_XCC_ID, 0, 4)")
e("s_add_u32 s52, s52, 1")
e("s_lshl_b32 s49, s21, 3")
e("v_mov_b32 v8, s49")
e("s_add_u32 s49, s49, s22")
e("v_mov_b32 v11, s49")
e("v_mov_b32 v9, s52")
e("s_mul_i32 s52, s52, 0x01010101")
e("s_mov_b64 exec, 1")
e("global_store_byte v11, v9, s[16:17]")
e("s_mov_b64 exec, -1")
e("s_mov_b32 s50, 0")
e("v_mov_b32 v14, 0")
lab("L_poll")
e("global_load_dwordx2 v[12:13], v8, s[16:17] sc1")
e("s_waitcnt vmcnt(0)")
e("v_readfirstlane_b32 s54, v12")
e("v_readfirstlane_b32 s55, v13")
e("s_add_u32 s50, s50, 1")
e("s_xor_b32 s54, s54, s52")
e("s_xor_b32 s55, s55, s52")
e("s_or_b32 s54, s54, s55")
if FORCE_SLOW:
    e("s_mov_b32 s54, 1")
e("s_cmp_eq_u32 s54, 0")
e("s_cbranch_scc1 L_decided")
e("s_cmp_lt_u32 s50, %d" % (3 if FORCE_SLOW else 150))
e("s_cbranch_scc0 L_timeout")
e("s_sleep 1")
e("s_branch L_poll")
lab("L_timeout")
e("v_mov_b32 v14, 1")
lab("L_decided")
e("v_mov_b32 v15, %d" % LDS_DEC)
e("ds_write_b32 v15, v14")
e("s_waitcnt lgkmcnt(0)")
lab("L_nopoll")
stamp(4)
e("s_barrier")
e("v_mov_b32 v15, %d" % LDS_DEC)
e("ds_read_b32 v14, v15")
e("s_waitcnt lgkmcnt(0)")
e("v_readfirstlane_b32 s50, v14")
e("s_cmp_eq_u32 s50, 0")
e("s_cbranch_scc1 L_gather")
e("v_and_b32 v5, 7, v3")
e("v_lshlrev_b32 v5, 12, v5")
e("v_lshl_add_u32 v5, v2, 3, v5")
e("v_mov_b32 v6, 0x80000000")
e("v_cmp_gt_u32 vcc, 8, v3")
e("s_mov_b32 s63, 1")
e("s_add_u32 s62, s62, 1")
e("s_and_b32 s62, s62, 7")
e("v_cndmask_b32 v7, v6, v5, vcc")
e("v_cndmask_b32 v8, v5, v6, vcc")
e("s_branch L_issue")
lab("L_gather")
for s2 in range(8):
    r = 32 + s2*4
    e("s_add_u32 s49, s48, %d" % (s2*8192))
    e("buffer_load_dwordx4 v[%d:%d], v7, s[36:39], s49 offen sc1" % (r, r+3))
for s2 in range(1, 8):
    r = 32 + s2*4
    e("s_waitcnt vmcnt(%d)" % (7 - s2))
    for j in range(4):
        e("v_add_f32 v%d, v%d, v%d" % (32+j, 32+j, r+j))
lab("L_final")
stamp(5)
e("v_cvt_pk_bf16_f32 v36, v32, v33")
e("v_cvt_pk_bf16_f32 v37, v34, v35")
e("s_lshl_b32 s49, s20, 4")
e("v_add_u32 v8, s49, v3")
e("v_lshlrev_b32 v9, 10, v2")
e("v_lshl_add_u32 v9, v8, 1, v9")
e("v_and_b32 v11, 1, v2")
e("v_lshlrev_b32 v11, 3, v11")
e("v_lshl_add_u32 v11, v8, 4, v11")
e("s_mov_b32 exec_lo, -1")
e("s_mov_b32 exec_hi, 0")
e("ds_write_b16 v9, v36 offset:%d" % (LDS_KP))
e("ds_write_b16_d16_hi v9, v36 offset:%d" % (LDS_KP+256))
e("ds_write_b16 v9, v37 offset:%d" % (LDS_KP+512))
e("ds_write_b16_d16_hi v9, v37 offset:%d" % (LDS_KP+768))
e("s_mov_b32 exec_lo, 0")
e("s_mov_b32 exec_hi, -1")
e("ds_write_b64 v11, v[36:37] offset:%d" % (LDS_VP))
e("s_mov_b64 exec, -1")
e("s_waitcnt lgkmcnt(0)")
e("s_barrier")
e("s_endpgm")

lab("L_qwave")
srd(28, 4, 5, 1<<24)
srd(32, 14, 15, 1<<24)
e("s_lshl_b32 s24, s22, 16")
e("s_add_u32 s23, s23, s24")
e("s_sub_u32 s25, s20, 8")
e("s_lshl_b32 s25, s25, 14")
e("s_add_u32 s25, s25, s23")
Q = 32
def qloads():
    for blk in range(4):
        e("s_add_u32 s26, s25, %d" % (blk*4096))
        for c in range(4):
            r = Q + blk*16 + c*4
            e("buffer_load_dwordx4 v[%d:%d], v10, s[28:31], s26 offen offset:%d" % (r, r+3, c*64) + NTL)
if QWHEN == 0: qloads()
e("v_subrev_u32 v5, 512, v0")
e("v_lshlrev_b32 v5, 3, v5")
e("v_mov_b32 v6, 0")
e("v_mov_b32 v7, 0")
e("ds_write_b64 v5, v[6:7] offset:%d" % (LDS_KP + 2048))
e("s_waitcnt lgkmcnt(0)")
e("s_barrier")
if QWHEN == 1: qloads()
e("v_mov_b32 v5, v10")
e("v_lshrrev_b32 v6, 2, v3")
e("v_lshlrev_b32 v6, 3, v6")
e("v_and_b32 v7, 3, v3")
e("v_add_u32 v6, v6, v7")
e("v_lshlrev_b32 v6, 4, v6")
e("v_and_b32 v7, 1, v2")
e("v_lshl_add_u32 v6, v7, 3, v6")
e("v_cmp_gt_u32 vcc, 2, v2")
e("s_mov_b32 s50, 0x3db504f3")
e("s_mov_b32 s51, 0x3fb8aa3b")
e("s_mov_b32 s52, 0xffff0000")
e("v_mov_b32 v8, %d" % LDS_DEC)
e("s_barrier")
e("s_barrier")
e("ds_read_b32 v9, v8")
e("s_waitcnt lgkmcnt(0)")
e("v_readfirstlane_b32 s53, v9")
e("s_cmp_eq_u32 s53, 0")
e("s_cbranch_scc1 L_qfast")
e("s_barrier")
lab("L_qfast")
e("s_barrier")
stamp(6)
KPA = 96; VPA = 112; O = 128
for c in range(4):
    e("ds_read_b128 v[%d:%d], v5 offset:%d" % (KPA+c*4, KPA+c*4+3, LDS_KP + c*64))
for t in range(8):
    e("ds_read_b64 v[%d:%d], v6 offset:%d" % (VPA+t*2, VPA+t*2+1, LDS_VP + (t>>1)*512 + (t&1)*64))
e("s_waitcnt lgkmcnt(0)")
for t in range(16):
    e("v_cndmask_b32 v%d, 0, v%d, vcc" % (VPA+t, VPA+t))
SS = [12, 20]; TT = [16, 24]
def both(fn):
    for b in range(2):
        fn(SS[b], TT[b])
def rnd(S, T):
    e("v_cvt_pk_bf16_f32 v%d, v%d, v%d" % (T, S, S+1))
    e("v_cvt_pk_bf16_f32 v%d, v%d, v%d" % (T+1, S+2, S+3))
    e("v_lshlrev_b32 v%d, 16, v%d" % (S, T))
    e("v_and_b32 v%d, s52, v%d" % (S+1, T))
    e("v_lshlrev_b32 v%d, 16, v%d" % (S+2, T+1))
    e("v_and_b32 v%d, s52, v%d" % (S+3, T+1))
def scl(S, T):
    for j in range(4): e("v_mul_f32 v%d, s50, v%d" % (S+j, S+j))
def mx(S, T):
    e("v_max_f32 v%d, v%d, v%d" % (T, S, S+1))
    e("v_max3_f32 v%d, v%d, v%d, v%d" % (T, T, S+2, S+3))
    e("v_mov_b32 v%d, v%d" % (T+1, T))
def sw(S, T):
    e("v_permlane16_swap_b32 v%d, v%d" % (T, T+1))
def mx2(S, T):
    e("v_max_f32 v%d, v%d, v%d" % (T, T, T+1))
    for j in range(4): e("v_sub_f32 v%d, v%d, v%d" % (S+j, S+j, T))
    for j in range(4): e("v_mul_f32 v%d, s51, v%d" % (S+j, S+j))
    for j in range(4): e("v_exp_f32 v%d, v%d" % (S+j, S+j))
def sm(S, T):
    e("v_add_f32 v%d, v%d, v%d" % (T, S, S+1))
    e("v_add_f32 v%d, v%d, v%d" % (T+1, S+2, S+3))
    e("v_add_f32 v%d, v%d, v%d" % (T, T, T+1))
    e("v_mov_b32 v%d, v%d" % (T+1, T))
def sm2(S, T):
    e("v_add_f32 v%d, v%d, v%d" % (T, T, T+1))
    e("v_rcp_f32 v%d, v%d" % (T, T))
def nrm(S, T):
    for j in range(4): e("v_mul_f32 v%d, v%d, v%d" % (S+j, S+j, T))
    e("v_cvt_pk_bf16_f32 v%d, v%d, v%d" % (T+2, S, S+1))
    e("v_cvt_pk_bf16_f32 v%d, v%d, v%d" % (T+3, S+2, S+3))
for pair in range(2):
    ws = [12, 8] if pair == 0 else [12, 8]
    if STAMP: ws = [w for w in ws]
    for b in range(2):
        blk = pair*2 + b
        e("s_waitcnt vmcnt(%d)" % ((3-blk)*4 + pair*8))
        S = SS[b]
        for c in range(4):
            r = Q + blk*16 + c*4
            e("v_mfma_f32_16x16x32_bf16 v[%d:%d], v[%d:%d], v[%d:%d], %s" % (S, S+3, KPA+c*4, KPA+c*4+3, r, r+3, "0" if c == 0 else "v[%d:%d]" % (S, S+3)))
    e("s_nop 7")
    both(rnd); both(scl); both(rnd); both(mx)
    e("s_nop 1")
    both(sw); both(mx2); both(sm)
    e("s_nop 1")
    both(sw); both(sm2); both(nrm)
    e("s_nop 1")
    for b in range(2):
        blk = pair*2 + b
        T = TT[b]
        for t in range(8):
            o = O + t*4
            e("v_mfma_f32_16x16x16_bf16 v[%d:%d], v[%d:%d], v[%d:%d], 0" % (o, o+3, VPA+t*2, VPA+t*2+1, T+2, T+3))
        e("s_add_u32 s26, s25, %d" % (blk*4096))
        e("s_nop 6")
        for tp in range(4):
            o = O + tp*8
            dst = Q + blk*16 + tp*4
            e("v_cvt_pk_bf16_f32 v%d, v%d, v%d" % (dst, o, o+1))
            e("v_cvt_pk_bf16_f32 v%d, v%d, v%d" % (dst+1, o+2, o+3))
            e("v_cvt_pk_bf16_f32 v%d, v%d, v%d" % (dst+2, o+4, o+5))
            e("v_cvt_pk_bf16_f32 v%d, v%d, v%d" % (dst+3, o+6, o+7))
            e("buffer_store_dwordx4 v[%d:%d], v10, s[32:35], s26 offen offset:%d" % (dst, dst+3, tp*64) + NTS)
stamp(7)
if STAMP:
    e("s_waitcnt vmcnt(0)")
stamp(8)
lab("L_end")
e("s_endpgm")

out += L
out.append('.section .rodata,"a"')
out.append('.p2align 6')
out.append('.amdhsa_kernel ' + NAME)
out.append('  .amdhsa_next_free_vgpr 168')
out.append('  .amdhsa_next_free_sgpr 72')
out.append('  .amdhsa_accum_offset 168')
out.append('  .amdhsa_group_segment_fixed_size 0')
out.append('  .amdhsa_kernarg_size 64')
out.append('  .amdhsa_user_sgpr_count 2')
out.append('  .amdhsa_user_sgpr_kernarg_segment_ptr 1')
out.append('  .amdhsa_system_sgpr_workgroup_id_x 1')
out.append('.end_amdhsa_kernel')
open(sys.argv[1], 'w').write('\n'.join(out) + '\n')
```
